```python
import torch

def _softmax(x, axis=-1):
    return torch.softmax(x, dim=axis)
def _gelu(x):
    return torch.nn.functional.gelu(x, approximate="tanh")
def _silu(x):
    return torch.nn.functional.silu(x)
def _sigmoid(x):
    return torch.sigmoid(x)
def _layernorm(x, axis=-1, eps=1e-5):
    m = x.mean(dim=axis, keepdim=True)
    v = x.var(dim=axis, keepdim=True, unbiased=False)
    return (x - m) / torch.sqrt(v + eps)
def _scatter_add(tgt, idx, src, axis=0):
    return tgt.clone().index_add_(axis, idx, src)
def _segment_sum(src, seg, n):
    out = torch.zeros((n,) + src.shape[1:], dtype=src.dtype)
    return out.index_add_(0, seg, src)
def _pad(x, pw):
    flat = tuple(v for pair in reversed(pw) for v in pair)
    return torch.nn.functional.pad(x, flat)

kernel_name = 'sequential_preLN__spectral_gfnet__glu_gated_reglu__prompt'

def setup_inputs():

    _w = (lambda a: (lambda t: t.to(torch.bfloat16) if t.is_floating_point() else t)(torch.as_tensor(a)))
    def _A_setup():
        B, S, D = 1, 2048, 512
        Df = D // 2 + 1
        return {
            "x": _w((lambda *s: torch.randn(*s, dtype=torch.bfloat16) * 0.05)(B, S, D)),
            "w_r": _w((lambda *s: torch.randn(*s, dtype=torch.bfloat16) * 0.4)(S, Df) * 0.02),
            "w_i": _w((lambda *s: torch.randn(*s, dtype=torch.bfloat16) * 0.4)(S, Df) * 0.02),
        }
    _A_in = _A_setup()

    def _B_setup():
        B, S, D, F = 1, 2048, 512, 1792
        return {
            "x": _w((lambda *s: torch.randn(*s, dtype=torch.bfloat16) * 0.05)(B, S, D)),
            "W_gate": _w((lambda *s: torch.randn(*s, dtype=torch.bfloat16) * 0.2)(D, F) * (2.0 / D) ** 0.5),
            "W_up": _w((lambda *s: torch.randn(*s, dtype=torch.bfloat16) * 0.2)(D, F) * (2.0 / D) ** 0.5),
            "W_down": _w((lambda *s: torch.randn(*s, dtype=torch.bfloat16) * 0.2)(F, D) * (1.0 / F) ** 0.5),
        }
    _B_in = _B_setup()

    return {
        "A_x": _A_in["x"],
        "A_w_r": _A_in["w_r"],
        "A_w_i": _A_in["w_i"],
        "B_x": _B_in["x"],
        "B_W_gate": _B_in["W_gate"],
        "B_W_up": _B_in["W_up"],
        "B_W_down": _B_in["W_down"],
    }

def reference(A_x, A_w_r, A_w_i, B_x, B_W_gate, B_W_up, B_W_down):
    def _A_ref(x, w_r, w_i):
        B, S, D = x.shape
        X = (lambda x, axes=(-2,-1): torch.fft.rfft2(x.float(), dim=axes))(x, axes=(-2, -1))
        W = w_r + 1j * w_i
        X = X * W
        y = (lambda x, s, axes=(-2,-1): torch.fft.irfft2(x, s=s, dim=axes).to(torch.bfloat16))(X, (S, D), axes=(-2, -1))
        return y

    def _B_ref(x, W_gate, W_up, W_down):
        gate = torch.einsum("bsd,df->bsf", x, W_gate)
        up = torch.einsum("bsd,df->bsf", x, W_up)
        gate = gate * (lambda x, dt: x.to(dt))(gate > 0, gate.dtype)
        h = gate * up
        return torch.einsum("bsf,fd->bsd", h, W_down)

    x = A_x
    h = x + _A_ref(_layernorm(x, axis=-1), A_w_r, A_w_i)
    h2 = h + _B_ref(_layernorm(h, axis=-1), B_W_gate, B_W_up, B_W_down)
    return h2
```

```python
import re

class R:
    __slots__ = ("k", "i", "n")
    def __init__(self, k, i, n=1):
        self.k, self.i, self.n = k, i, n
    def __str__(self):
        if self.n == 1: return f"{self.k}{self.i}"
        return f"{self.k}[{self.i}:{self.i+self.n-1}]"
    __repr__ = __str__
    def __getitem__(self, x):
        if isinstance(x, slice):
            st = x.start or 0
            en = x.stop if x.stop is not None else self.n
            assert 0 <= st < en <= self.n, (self, x)
            return R(self.k, self.i + st, en - st)
        assert 0 <= x < self.n, (self, x)
        return R(self.k, self.i + x, 1)
    def sub(self, st, n):
        assert st + n <= self.n, (self, st, n)
        return R(self.k, self.i + st, n)
    def regs(self):
        return {(self.k, self.i + j) for j in range(self.n)}

def v(i, n=1): return R("v", i, n)
def a(i, n=1): return R("a", i, n)
def s(i, n=1): return R("s", i, n)
VCC = "vcc"; EXEC = "exec"; M0 = "m0"; OFF = "off"

TRANS = ("v_exp_f32", "v_log_f32", "v_rcp_f32", "v_rsq_f32", "v_sqrt_f32", "v_sin_f32", "v_cos_f32", "v_rcp_iflag_f32")
RMW = ("v_fmac_f32", "v_dot2c_f32_bf16", "v_pk_fmac_f16", "v_fmac_f16", "v_writelane_b32")
NOOPND = ("s_waitcnt", "s_barrier", "s_nop", "s_endpgm", "s_setprio", "s_sleep", "s_branch", "s_cbranch_scc0",
          "s_cbranch_scc1", "s_cbranch_vccz", "s_cbranch_vccnz", "s_cbranch_execz", "s_cbranch_execnz",
          "buffer_wbl2", "buffer_inv", "s_sethalt")

def special(x):
    if x == "vcc": return {("s", "vcc")}
    if x == "exec": return {("s", "exec")}
    if x == "m0": return {("s", "m0")}
    return set()

def regs_of(x):
    if isinstance(x, R): return x.regs()
    if isinstance(x, str):
        t = x.strip()
        if t in ("vcc", "exec", "m0"): return special(t)
        t2 = t.lstrip("-")
        if t2.startswith("abs(") and t2.endswith(")"): t2 = t2[4:-1]
        if t2.startswith("|") and t2.endswith("|"): t2 = t2[1:-1]
        m = re.fullmatch(r"([vas])(\d+)", t2)
        if m: return {(m.group(1), int(m.group(2)))}
        m = re.fullmatch(r"([vas])\[(\d+):(\d+)\]", t2)
        if m: return {(m.group(1), j) for j in range(int(m.group(2)), int(m.group(3)) + 1)}
    return set()

class I:
    __slots__ = ("op", "ops", "mods", "cls", "wr", "rd", "label", "target", "passes", "comment", "mA", "mB", "mC", "mD", "auto")
    def __init__(self, op, ops=(), mods="", comment=""):
        self.op, self.ops, self.mods, self.comment = op, list(ops), mods, comment
        self.label = None; self.target = None; self.passes = 0; self.auto = False
        self.mA = self.mB = self.mC = self.mD = set()
        self.analyze()
    def analyze(self):
        op, ops = self.op, self.ops
        wr, rd = set(), set()
        cls = "other"
        base = re.sub(r"_(e32|e64|dpp|sdwa)$", "", op)
        if op == "label":
            cls = "label"
        elif op.startswith("v_mfma"):
            cls = "mfma"
            self.mD = regs_of(ops[0]); self.mA = regs_of(ops[1]); self.mB = regs_of(ops[2]); self.mC = regs_of(ops[3])
            wr = set(self.mD); rd = self.mA | self.mB | self.mC
            if "32x32x16" in op or "32x32x8" in op: self.passes = 8
            elif "16x16x32" in op or "16x16x16" in op: self.passes = 4
            else: raise ValueError(op)
        elif op.startswith("v_"):
            cls = "valu"
            if base.startswith("v_cmp"):
                wr = regs_of(ops[0]);  rd = set().union(*[regs_of(x) for x in ops[1:]])
                if base.startswith("v_cmpx"): wr |= special("exec")
            elif base in ("v_add_co_u32", "v_sub_co_u32", "v_subrev_co_u32"):
                wr = regs_of(ops[0]) | regs_of(ops[1]); rd = set().union(*[regs_of(x) for x in ops[2:]])
            elif base in ("v_addc_co_u32", "v_subb_co_u32"):
                wr = regs_of(ops[0]) | regs_of(ops[1]); rd = set().union(*[regs_of(x) for x in ops[2:]])
            elif base in ("v_permlane32_swap_b32", "v_permlane16_swap_b32"):
                wr = regs_of(ops[0]) | regs_of(ops[1]); rd = set(wr)
            elif base == "v_nop":
                pass
            else:
                wr = regs_of(ops[0]); rd = set().union(*[regs_of(x) for x in ops[1:]]) if len(ops) > 1 else set()
                if base in RMW: rd |= wr
                if base == "v_cndmask_b32" and len(ops) == 3: rd |= special("vcc")
        elif op.startswith("ds_"):
            cls = "ds"
            if op.startswith("ds_read") or op.startswith("ds_bpermute") or op.startswith("ds_permute") or op.startswith("ds_swizzle"):
                wr = regs_of(ops[0]); rd = set().union(*[regs_of(x) for x in ops[1:]])
            else:
                rd = set().union(*[regs_of(x) for x in ops])
        elif op.startswith("buffer_") and op not in NOOPND:
            cls = "vmem"
            if " lds" in (" " + self.mods):
                rd = set().union(*[regs_of(x) for x in ops]) | special("m0")
            elif op.startswith("buffer_load"):
                wr = regs_of(ops[0]); rd = set().union(*[regs_of(x) for x in ops[1:]])
            elif op.startswith("buffer_atomic"):
                rd = set().union(*[regs_of(x) for x in ops])
                if "sc0" in self.mods: wr = regs_of(ops[0])
            else:
                rd = set().union(*[regs_of(x) for x in ops])
        elif op.startswith("global_"):
            cls = "vmem"
            if op.startswith("global_load_lds"):
                rd = set().union(*[regs_of(x) for x in ops]) | special("m0")
            elif op.startswith("global_load"):
                wr = regs_of(ops[0]); rd = set().union(*[regs_of(x) for x in ops[1:]])
            elif op.startswith("global_atomic") and "sc0" in self.mods:
                wr = regs_of(ops[0]); rd = set().union(*[regs_of(x) for x in ops[1:]])
            else:
                rd = set().union(*[regs_of(x) for x in ops])
        elif op.startswith("s_load") or op.startswith("s_memtime") or op.startswith("s_memrealtime") or op.startswith("s_buffer_load"):
            cls = "smem"
            wr = regs_of(ops[0]); rd = set().union(*[regs_of(x) for x in ops[1:]]) if len(ops) > 1 else set()
        elif op in NOOPND:
            cls = "ctl"
            if op.startswith("s_cbranch") or op == "s_branch":
                self.target = ops[0]
        elif op.startswith("s_"):
            cls = "salu"
            if op.startswith("s_cmp") or op.startswith("s_bitcmp"):
                rd = set().union(*[regs_of(x) for x in ops])
            else:
                wr = regs_of(ops[0]); rd = set().union(*[regs_of(x) for x in ops[1:]]) if len(ops) > 1 else set()
                if "saveexec" in op: wr |= special("exec"); rd |= special("exec")
                if op in ("s_addk_i32", "s_mulk_i32"): rd |= wr
        else:
            raise ValueError("unknown op " + op)
        self.cls, self.wr, self.rd = cls, wr, rd
    def text(self):
        if self.op == "label": return f"{self.label}:"
        t = "    " + self.op
        if self.ops: t += " " + ", ".join(fmt(x) for x in self.ops)
        if self.mods: t += " " + self.mods
        if self.comment: t += "   ; " + self.comment
        return t
    def states(self):
        if self.op == "label": return 0
        if self.op == "s_nop": return int(self.ops[0]) + 1
        return 1

def fmt(x):
    if isinstance(x, float):
        return repr(x)
    if isinstance(x, int):
        if -16 <= x <= 64: return str(x)
        return hex(x & 0xFFFFFFFF)
    return str(x)

def is_vgpr(r): return r[0] in ("v", "a")
def is_sgpr(r): return r[0] == "s"

def required(p, c):
    need = 0
    pw = p.wr
    if p.cls == "valu":
        vw = {r for r in pw if is_vgpr(r)}
        sw = {r for r in pw if is_sgpr(r)}
        if c.cls == "mfma" and vw & c.rd: need = max(need, 2)
        if c.cls == "mfma" and ("s", "exec") in sw: need = max(need, 4)
        if c.cls == "valu":
            cb = re.sub(r"_(e32|e64|dpp|sdwa)$", "", c.op)
            if cb in ("v_readfirstlane_b32", "v_readlane_b32") and vw & c.rd: need = max(need, 1)
            if cb.startswith("v_permlane") and vw & c.rd: need = max(need, 2)
            if ("row_" in c.mods or "quad_perm" in c.mods or "dpp" in c.op or "wave_" in c.mods or "row_bcast" in c.mods) and vw & c.rd: need = max(need, 2)
            if ("row_" in c.mods or "quad_perm" in c.mods) and ("s", "exec") in sw: need = max(need, 5)
            if sw & c.rd: need = max(need, 2)
            if cb in ("v_readlane_b32", "v_writelane_b32") and sw & c.rd: need = max(need, 4)
            if ("s", "exec") in sw and cb in ("v_readlane_b32", "v_readfirstlane_b32", "v_writelane_b32"): need = max(need, 4)
            if ("s", "exec") in sw and cb.startswith("v_permlane"): need = max(need, 4)
            pb = re.sub(r"_(e32|e64|dpp|sdwa)$", "", p.op)
            if pb in TRANS and (vw & c.rd) : need = max(need, 1)
            if ("op_sel" in p.mods or "dst_sel" in p.mods) and vw & (c.rd | c.wr): need = max(need, 1)
        pb = re.sub(r"_(e32|e64|dpp|sdwa)$", "", p.op)
        if pb in TRANS and (vw & c.rd): need = max(need, 1)
        if p.op.startswith("v_dot2"):
            if vw & (c.rd | c.wr):
                same = (c.op == p.op and c.ops and regs_of(c.ops[0]) == vw and not (vw & set().union(*[regs_of(x) for x in c.ops[1:]])))
                if not same: need = max(need, 3)
        if c.cls == "vmem" and sw & c.rd: need = max(need, 5)
        if c.cls in ("salu", "smem", "ctl") and sw & c.rd: need = max(need, 4)
        if c.op in ("s_cbranch_vccz", "s_cbranch_vccnz") and ("s", "vcc") in sw: need = max(need, 5)
        if c.op in ("s_cbranch_execz", "s_cbranch_execnz") and ("s", "exec") in sw: need = max(need, 5)
    if p.cls == "mfma":
        P = p.passes
        lat = {4: 8, 8: 12}[P]
        if c.cls == "mfma":
            if p.mD & (c.mA | c.mB): need = max(need, lat)
            if p.mD & c.mC:
                if p.mD == c.mC and p.passes == c.passes: pass
                else: need = max(need, {4: 6, 8: 10}[P])
            if p.mD & c.mD and not (p.mD & c.mC):
                need = max(need, {4: 6, 8: 10}[P])
        elif c.cls in ("valu", "vmem", "ds"):
            if p.mD & (c.rd | c.wr): need = max(need, lat)
            if c.cls == "valu" and p.mC & c.wr: need = max(need, {4: 3, 8: 7}[P])
            if c.cls in ("vmem", "ds") and p.mC & c.wr: need = max(need, {4: 3, 8: 7}[P])
    if p.cls == "vmem":
        wide = ("x4" in p.op or "x3" in p.op) and ("store" in p.op)
        if wide:
            data = regs_of(p.ops[0]) if p.op.startswith("buffer") else regs_of(p.ops[1])
            if data & c.wr: need = max(need, 2 if c.cls == "valu" else 1)
            if c.cls == "mfma" and data & c.wr: need = max(need, 2)
    if p.cls == "ds" and p.op in ("ds_write_b128", "ds_write_b96", "ds_write_b64", "ds_write2_b64"):
        data = set().union(*[regs_of(x) for x in p.ops[1:]])
        if data & c.wr and c.cls in ("valu", "mfma"): need = max(need, 1)
    if p.cls == "salu":
        if ("s", "m0") in p.wr and (("s", "m0") in c.rd) and c.cls in ("vmem", "ds"): need = max(need, 1)
        if ("s", "exec") in p.wr and c.cls == "valu" and ("row_" in c.mods or "quad_perm" in c.mods): need = max(need, 5)
    return need

MAXW = 20

class Asm:
    def __init__(self):
        self.ins = []
        self.nlabel = 0
    def __call__(self, op, *ops, mods="", c=""):
        i = I(op, ops, mods, c); self.ins.append(i); return i
    def label(self, name):
        i = I("label"); i.label = name; self.ins.append(i); return i
    def newlabel(self, base="L"):
        self.nlabel += 1; return f"{base}_{self.nlabel}"
    def comment(self, t):
        i = I("label"); i.label = None; i.comment = t; i.op = "label"; self.ins.append(i)
    def wait(self, vm=None, lgkm=None):
        t = []
        if vm is not None: assert 0 <= vm <= 63; t.append(f"vmcnt({vm})")
        if lgkm is not None: assert 0 <= lgkm <= 15; t.append(f"lgkmcnt({lgkm})")
        return self("s_waitcnt", mods=" ".join(t))
    def preds(self):
        lab = {i.label: n for n, i in enumerate(self.ins) if i.op == "label" and i.label}
        pred = [[] for _ in self.ins]
        for n, i in enumerate(self.ins):
            if n + 1 < len(self.ins) and i.op not in ("s_branch", "s_endpgm"):
                pred[n + 1].append(n)
            if i.target is not None and i.target in lab:
                pred[lab[i.target]].append(n)
        return pred
    def fix_hazards(self, verbose=False):
        total = 0
        while True:
            pred = self.preds()
            ins = self.ins
            inserted = False
            for n, c in enumerate(ins):
                if c.cls in ("label",) or c.op == "s_nop": continue
                deficit = 0
                stack = [(p, 0) for p in pred[n]]
                seen = {}
                while stack:
                    p, dist = stack.pop()
                    if dist >= MAXW: continue
                    if seen.get(p, 99) <= dist: continue
                    seen[p] = dist
                    pi = ins[p]
                    if pi.cls != "label":
                        need = required(pi, c)
                        if need > dist: deficit = max(deficit, need - dist)
                    nd = dist + pi.states()
                    for q in pred[p]: stack.append((q, nd))
                if deficit:
                    k = deficit
                    pos = n
                    while k > 0:
                        t = min(k, 16)
                        nop = I("s_nop", [t - 1]); nop.auto = True
                        nop.comment = f"auto pad for {c.op}"
                        ins.insert(pos, nop); k -= t; total += deficit
                    inserted = True
                    break
            if not inserted: break
        return total
    def fix_hazards_fast(self):
        total = 0
        for _ in range(4):
            pred = None
            changed = False
            out = []
            ins = self.ins
            pred = self.preds()
            extra = [0] * len(ins)
            for n, c in enumerate(ins):
                if c.cls == "label" or c.op == "s_nop": continue
                deficit = 0
                stack = [(p, 0) for p in pred[n]]
                seen = {}
                while stack:
                    p, dist = stack.pop()
                    if dist >= MAXW: continue
                    if seen.get(p, 99) <= dist: continue
                    seen[p] = dist
                    pi = ins[p]
                    if pi.cls != "label":
                        need = required(pi, c)
                        if need > dist: deficit = max(deficit, need - dist)
                    nd = dist + pi.states() + extra[p]
                    for q in pred[p]: stack.append((q, nd))
                if deficit:
                    extra[n] += deficit; changed = True; total += deficit
            for n, c in enumerate(ins):
                k = extra[n]
                while k > 0:
                    t = min(k, 16)
                    nop = I("s_nop", [t - 1]); nop.auto = True; nop.comment = f"pad"
                    out.append(nop); k -= t
                out.append(c)
            self.ins = out
            if not changed: break
        return total
    def check_waits(self, name=""):
        ins = self.ins
        lab = {i.label: n for n, i in enumerate(ins) if i.op == "label" and i.label}
        vm, lg = [], []
        taken = set()
        n = 0; errs = 0; steps = 0
        while n < len(ins):
            steps += 1
            i = ins[n]
            if i.cls != "label":
                pend = set()
                for r, _ in vm: pend |= r
                for r, _ in lg: pend |= r
                bad = (i.rd | i.wr) & pend
                if bad and i.op != "s_waitcnt":
                    print(f"[{name}] WAIT-HAZARD at #{n}: {i.text().strip()}  pending regs {sorted(bad)[:6]}")
                    errs += 1
                if i.op == "s_waitcnt":
                    m = re.search(r"vmcnt\((\d+)\)", i.mods)
                    if m:
                        k = int(m.group(1))
                        while len(vm) > k: vm.pop(0)
                    m = re.search(r"lgkmcnt\((\d+)\)", i.mods)
                    if m:
                        k = int(m.group(1))
                        if any(x[1] == "smem" for x in lg):
                            if k == 0: lg.clear()
                        else:
                            while len(lg) > k: lg.pop(0)
                elif i.cls == "vmem": vm.append((set(i.wr), "vm"))
                elif i.cls == "ds": lg.append((set(i.wr), "ds"))
                elif i.cls == "smem": lg.append((set(i.wr), "smem"))
                if i.op == "s_endpgm": break
                if i.target is not None and i.target in lab:
                    t = lab[i.target]
                    if i.op == "s_branch": n = t; continue
                    if t < n and n not in taken:
                        taken.add(n); n = t; continue
            n += 1
        return errs
    def text(self):
        out = []
        for i in self.ins:
            if i.op == "label" and i.label is None: out.append("    ; " + i.comment)
            else: out.append(i.text())
        return "\n".join(out) + "\n"

def kernel_text(name, asm, align=True):
    return f".globl {name}\n.p2align 8\n.type {name},@function\n{name}:\n" + asm.text()

def descriptor(name, nvgpr, nagpr, nsgpr):
    acc = (nvgpr + 3) // 4 * 4
    tot = acc + nagpr if nagpr else nvgpr
    return f""".p2align 6
.amdhsa_kernel {name}
  .amdhsa_next_free_vgpr {tot}
  .amdhsa_next_free_sgpr {nsgpr}
  .amdhsa_accum_offset {acc}
  .amdhsa_group_segment_fixed_size 0
  .amdhsa_kernarg_size 80
  .amdhsa_user_sgpr_count 2
  .amdhsa_user_sgpr_kernarg_segment_ptr 1
  .amdhsa_system_sgpr_workgroup_id_x 1
.end_amdhsa_kernel
"""
```

```python
from asmlib import *
import struct
KNAME = "sequential_preLN__spectral_gfnet__glu_gated_reglu__prompt_kernel"
WS_AT, WS_WT, WS_ZT, WS_HC, WS_HH = 0x0, 0x200000, 0x400000, 0x600000, 0x800000
WS_MEAN, WS_SSQ = 0xF00000, 0xF10000
SZ_X = 2048*512*2
SZ_W = 2048*257*2
SZ_WG = 512*1792*2
SZ_HH = 2048*1792*2
ARG = dict(x=0, wr=8, wi=16, bx=24, wg=32, wu=40, wd=48, out=56, dbg=64, ws=72)

def f2u(x): return struct.unpack("<I", struct.pack("<f", x))[0]

def srd(A, dst, base, off, size):
    if off:
        A("s_add_u32", dst[0], base[0], off)
        A("s_addc_u32", dst[1], base[1], 0)
    else:
        A("s_mov_b32", dst[0], base[0])
        A("s_mov_b32", dst[1], base[1])
    A("s_mov_b32", dst[2], size)
    A("s_mov_b32", dst[3], 0x20000)

MF32 = "v_mfma_f32_32x32x16_bf16"
MF16 = "v_mfma_f32_16x16x32_bf16"
```

```python
from common import *

LDS_K1 = 84480
def gen_k1(name="p1_kernel"):
    A = Asm()
    END = name + "_END"
    sX, sWR, sWI, sAT, sWT, sMEAN = s(8,4), s(12,4), s(16,4), s(20,4), s(24,4), s(28,4)
    sW, sS2, sKB, sNT, sKH, sT0 = s(32), s(33), s(34), s(35), s(36), s(37)
    t0, t1, t2, t3 = s(38), s(39), s(40), s(41)
    sONES = s(42); sXB = s(43); sLB = s(52)
    pX, pWR, pWI, pWS = s(44,2), s(46,2), s(48,2), s(50,2)
    XOFF, XCH, STAT, RB = 0, 65536, 81920, 83968
    vL, vN, vH = v(1), v(2), v(3)
    vT = [v(4+i) for i in range(8)]
    vL16 = v(12)
    vPA, vPB, vKF, vINC2, vINC10, vSGN = v(13), v(14), v(15), v(16), v(17), v(18)
    vWO, vWS = v(19), v(20)
    vSUM, vSQ = v(21), v(22)
    vAD0 = v(24,8); vAD1 = v(32,8)
    vWL = v(40,16)
    vF = v(64,64)
    vACC = [v(128,16), v(144,16)]
    vXA = [[v(160,4), v(164,4)], [v(168,4), v(172,4)]]
    vR = v(176,16)
    vO = v(192,8)

    A("s_cmp_ge_u32", s(2), 256)
    A("s_cbranch_scc1", END)
    A("s_load_dwordx4", s(44,4), s(0,2), ARG["x"])
    A("s_load_dwordx2", pWI, s(0,2), ARG["wi"])
    A("s_load_dwordx2", pWS, s(0,2), ARG["ws"])
    A("v_and_b32", vL, 63, v(0))
    A("v_lshrrev_b32", vT[0], 6, v(0))
    A("v_and_b32", vN, 31, vL)
    A("v_readfirstlane_b32", sW, vT[0])
    A("v_lshrrev_b32", vH, 5, vL)
    A("v_lshlrev_b32", vL16, 4, vL)
    A("s_and_b32", t0, s(2), 7)
    A("s_lshr_b32", t1, s(2), 6)
    A("s_lshl_b32", t1, t1, 3)
    A("s_add_u32", sS2, t0, t1)
    A("s_lshr_b32", t0, s(2), 3)
    A("s_and_b32", sKB, t0, 7)
    A("s_and_b32", sNT, sW, 1)
    A("s_lshr_b32", sKH, sW, 1)
    A("s_xor_b32", sT0, sNT, sKH)
    A("s_mov_b32", sONES, 0x3f803f80)
    A("s_lshl_b32", t0, sKH, 4)
    A("s_lshl_b32", t1, sNT, 3)
    A("s_add_u32", t0, t0, t1)
    A("s_lshl_b32", t0, t0, 5)
    A("s_add_u32", t0, t0, sS2)
    A("s_lshl_b32", sXB, t0, 10)
    A("s_lshl_b32", sLB, sW, 14)
    A.wait(lgkm=0)
    srd(A, sX, pX, 0, SZ_X)
    for i in range(16):
        off = 32*((i>>2)&1) + 4*(i>>3) + (i&3)
        tv = vT[i & 1]
        A("v_xor_b32", tv, i << 4, vL16)
        A("s_add_u32", t0, sXB, off*32768)
        A("s_add_u32", M0, sLB, i*1024)
        A("s_nop", 0)
        A("buffer_load_dwordx4", tv, sX, t0, mods="offen lds")
    srd(A, sWR, pWR, 0, SZ_W)
    srd(A, sWI, pWI, 0, SZ_W)
    srd(A, sAT, pWS, WS_AT, 0x200000)
    srd(A, sWT, pWS, WS_WT, 0x200000)
    srd(A, sMEAN, pWS, WS_MEAN, 8192)
    A("s_lshr_b32", t0, s(2), 3)
    A("s_lshr_b32", t1, t0, 3)
    A("s_lshl_b32", t1, t1, 4)
    A("s_and_b32", t2, t0, 1)
    A("s_lshl_b32", t2, t2, 3)
    A("s_add_u32", t1, t1, t2)
    A("s_lshr_b32", t2, t0, 1)
    A("s_and_b32", t2, t2, 3)
    A("s_lshl_b32", t2, t2, 8)
    A("s_add_u32", t1, t1, t2)
    A("s_lshl_b32", t2, sW, 1)
    A("s_add_u32", t1, t1, t2)
    A("v_add_u32", vT[0], t1, vH)
    A("s_movk_i32", t3, 514)
    A("v_mul_lo_u32", vT[0], vT[0], t3)
    A("s_and_b32", t2, s(2), 7)
    A("s_lshl_b32", t2, t2, 5)
    A("v_add_u32", vT[1], t2, vN)
    A("v_mov_b32", vT[2], 256)
    A("v_cmp_eq_u32", VCC, 0, vT[1])
    A("v_cndmask_b32", vT[2], vT[1], vT[2], VCC)
    A("v_lshl_add_u32", vWO, vT[2], 1, vT[0])
    A("s_lshl_b32", t2, t0, 3)
    A("s_lshl_b32", t3, sW, 1)
    A("s_add_u32", t2, t2, t3)
    A("v_add_u32", vT[3], t2, vH)
    A("v_lshlrev_b32", vT[3], 4, vT[3])
    A("v_lshl_add_u32", vWS, vT[1], 13, vT[3])
    for b in range(2):
        for r in range(4):
            A("s_mov_b32", t0, r*32896 + b*526336)
            A("buffer_load_ushort", vWL[4*b+r], vWO, sWR, t0, mods="offen")
            A("buffer_load_ushort", vWL[8+4*b+r], vWO, sWI, t0, mods="offen")
    A("s_lshl_b32", t0, sKB, 5)
    A("v_add_u32", vT[0], t0, vN)
    A("v_mov_b32", vT[1], 256)
    A("v_cmp_eq_u32", VCC, 0, vT[0])
    A("v_cndmask_b32", vT[0], vT[0], vT[1], VCC)
    A("v_cvt_f32_u32", vKF, vT[0])
    A("v_mul_f32", vKF, f2u(1/512), vKF)
    A("v_and_b32", vT[1], 1, vT[0])
    A("v_mov_b32", vT[2], 0x80008000)
    A("v_mul_lo_u32", vSGN, vT[1], vT[2])
    A("s_lshl_b32", t0, sKH, 7)
    A("v_lshlrev_b32", vT[1], 3, vH)
    A("v_add_u32", vT[1], t0, vT[1])
    A("v_cvt_f32_u32", vT[1], vT[1])
    A("s_mul_i32", t0, sNT, f2u(0.25))
    A("v_mov_b32", vT[2], t0)
    A("v_fma_f32", vPA, vKF, vT[1], vT[2])
    A("v_add_f32", vPB, vPA, vKF)
    A("v_add_f32", vINC2, vKF, vKF)
    A("v_mul_f32", vINC10, f2u(10.0), vKF)
    for sg in range(8):
        for jj in range(4):
            ta, tb = vT[4 + 2*(jj & 1)], vT[5 + 2*(jj & 1)]
            A("v_cos_f32", ta, vPA)
            A("v_cos_f32", tb, vPB)
            inc = vINC10 if jj == 3 else vINC2
            A("v_add_f32", vPA, vPA, inc)
            A("v_add_f32", vPB, vPB, inc)
            A("v_cvt_pk_bf16_f32", vF[4*sg+jj], ta, tb)
            A("v_xor_b32", vF[32+4*sg+jj], vSGN, vF[4*sg+jj])
    A("v_and_b32", vT[0], 15, vN)
    A("v_xor_b32", vT[0], vT[0], vH)
    A("v_lshlrev_b32", vT[0], 4, vT[0])
    A("v_lshl_add_u32", vT[0], vN, 10, vT[0])
    A("s_lshl_b32", t0, sKH, 8)
    A("s_lshl_b32", t1, sT0, 15)
    A("s_or_b32", t0, t0, t1)
    A("v_xor_b32", vT[0], t0, vT[0])
    for sg in range(8):
        A("v_xor_b32", vAD0[sg], sg << 5, vT[0])
        A("v_xor_b32", vAD1[sg], (sg << 5) | 0x8000, vT[0])
    A("v_mov_b32", vSUM, 0)
    A("v_mov_b32", vSQ, 0)
    A.wait(vm=16)
    A("s_barrier")
    def rd(sg, par):
        o = 512 if sg >= 8 else 0
        A("ds_read_b128", vXA[par][0], vAD0[sg & 7], mods=f"offset:{o}")
        A("ds_read_b128", vXA[par][1], vAD1[sg & 7], mods=f"offset:{o}")
    rd(0, 0)
    for sg in range(16):
        par = sg & 1
        if sg < 15:
            rd(sg+1, par ^ 1); A.wait(lgkm=2)
        else:
            A.wait(lgkm=0)
        for sl in range(2):
            A(MF32, vACC[sl], vXA[par][sl], vF.sub(4*sg, 4), (0 if sg == 0 else vACC[sl]))
        for j in range(4):
            A("v_dot2c_f32_bf16", vSUM, sONES, vXA[par][0][j])
            A("v_dot2c_f32_bf16", vSQ, vXA[par][0][j], vXA[par][0][j])
    A.wait(vm=0)
    for i in range(8):
        A("v_lshl_or_b32", vWL[i], vWL[8+i], 16, vWL[i])
    A("buffer_store_dwordx4", vWL.sub(0,4), vWS, sWT, 0, mods="offen")
    A("buffer_store_dwordx4", vWL.sub(4,4), vWS, sWT, 0, mods="offen offset:0")
    A.ins.pop()
    A("s_movk_i32", t0, 4096)
    A("buffer_store_dwordx4", vWL.sub(4,4), vWS, sWT, t0, mods="offen")
    A("s_lshl_b32", t0, sT0, 10)
    A("s_lshl_b32", t1, sKH, 4)
    A("s_add_u32", t0, t0, t1)
    A("s_add_u32", t0, t0, STAT)
    A("v_lshlrev_b32", vT[0], 5, vN)
    A("v_lshl_add_u32", vT[0], vH, 3, vT[0])
    A("v_add_u32", vT[0], t0, vT[0])
    A("v_mov_b32", vT[2], vSUM)
    A("v_mov_b32", vT[3], vSQ)
    A("ds_write_b64", vT[0], v(vT[2].i, 2))
    A("s_lshl_b32", t0, sW, 12)
    A("s_add_u32", t0, t0, XCH)
    A("v_add_u32", vT[1], t0, vL16)
    for q in range(4):
        A("ds_write_b128", vT[1], vACC[1].sub(4*q, 4), mods=f"offset:{q*1024}")
    A.wait(lgkm=0)
    A("s_barrier")
    A("v_xor_b32", vT[1], 2 << 12, vT[1])
    for q in range(4):
        A("ds_read_b128", vACC[1].sub(4*q, 4), vT[1], mods=f"offset:{q*1024}")
    A("s_lshl_b32", t0, sT0, 10)
    A("s_add_u32", t0, t0, STAT)
    A("v_lshlrev_b32", vT[0], 5, vN)
    A("v_add_u32", vT[0], t0, vT[0])
    A("ds_read_b128", vO.sub(0,4), vT[0])
    A("ds_read_b128", vO.sub(4,4), vT[0], mods="offset:16")
    A.wait(lgkm=0)
    A("v_add_f32", vO[0], vO[0], vO[2]); A("v_add_f32", vO[1], vO[1], vO[3])
    A("v_add_f32", vO[4], vO[4], vO[6]); A("v_add_f32", vO[5], vO[5], vO[7])
    A("v_add_f32", vO[0], vO[0], vO[4]); A("v_add_f32", vO[1], vO[1], vO[5])
    A("v_mul_f32", vO[0], f2u(1/512), vO[0])
    A("v_mul_f32", vO[1], f2u(1/512), vO[1])
    A("v_fma_f32", vO[1], "-"+str(vO[0]), vO[0], vO[1])
    A("v_max_f32", vO[1], 0, vO[1])
    A("v_add_f32", vO[1], f2u(1e-5), vO[1])
    A("v_rsq_f32", vO[1], vO[1])
    A("s_lshl_b32", t0, sW, 7)
    A("s_add_u32", t0, t0, RB)
    A("v_lshlrev_b32", vT[2], 2, vN)
    A("v_add_u32", vT[2], t0, vT[2])
    A("ds_write_b32", vT[2], vO[1])
    A("v_lshlrev_b32", vT[3], 4, vH)
    A("v_add_u32", vT[3], t0, vT[3])
    for i in range(16):
        A("v_add_f32", vACC[0][i], vACC[0][i], vACC[1][i])
    A.wait(lgkm=0)
    for q in range(4):
        A("ds_read_b128", vR.sub(4*q,4), vT[3], mods=f"offset:{q*32}")
    SK = name + "_SKIPMEAN"
    A("s_or_b32", t0, sKB, sNT)
    A("s_cmp_lg_u32", t0, 0)
    A("s_cbranch_scc1", SK)
    A("v_bfe_u32", vT[4], vN, 2, 1)
    A("v_lshlrev_b32", vT[4], 5, vT[4])
    A("v_lshrrev_b32", vT[5], 3, vN)
    A("v_lshl_add_u32", vT[4], vT[5], 2, vT[4])
    A("v_and_b32", vT[5], 3, vN)
    A("v_add_u32", vT[4], vT[4], vT[5])
    A("s_lshl_b32", t0, sT0, 4)
    A("v_add_u32", vT[4], t0, vT[4])
    A("v_lshlrev_b32", vT[4], 5, vT[4])
    A("v_add_u32", vT[4], sS2, vT[4])
    A("v_lshlrev_b32", vT[4], 2, vT[4])
    A("buffer_store_dword", vO[0], vT[4], sMEAN, 0, mods="offen")
    A.label(SK)
    A.wait(lgkm=0)
    for i in range(16):
        A("v_mul_f32", vACC[0][i], vACC[0][i], vR[i])
    for i in range(8):
        A("v_cvt_pk_bf16_f32", vO[i], vACC[0][2*i], vACC[0][2*i+1])
    A("v_lshlrev_b32", vT[0], 13, vN)
    A("v_lshl_add_u32", vT[0], vH, 6, vT[0])
    A("s_lshl_b32", t0, sKB, 18)
    A("s_lshl_b32", t1, sNT, 12)
    A("s_add_u32", t0, t0, t1)
    A("s_lshl_b32", t1, sS2, 7)
    A("s_add_u32", t0, t0, t1)
    A("s_lshl_b32", t1, sT0, 5)
    A("s_add_u32", t0, t0, t1)
    A("buffer_store_dwordx4", vO.sub(0,4), vT[0], sAT, t0, mods="offen")
    A("buffer_store_dwordx4", vO.sub(4,4), vT[0], sAT, t0, mods="offen offset:16")
    A.label(END)
    A("s_endpgm")
    return A, dict(nv=200, na=0, ns=56, lds=LDS_K1)
```

```python
from common import *

LDS_K2 = 2*32*144
def gen_k2(name="p2_kernel"):
    A = Asm()
    END = name + "_END"
    sAT, sWT, sZT = s(8,4), s(12,4), s(16,4)
    sW = s(20); t0, t1, t2, t3 = s(21), s(22), s(23), s(24)
    sSC = s(25)
    pWS = s(26,2)
    vL, vN, vG = v(1), v(2), v(3)
    vT = [v(4+i) for i in range(12)]
    vIN = v(16, 32)
    def IN(p,a_,u): return vIN.sub(((p*2+a_)*2+u)*4, 4)
    vW = v(48, 8)
    vC64, vS64, vN64 = v(56,8), v(64,8), v(72,8)
    vC32, vS32, vN32 = v(80,8), v(88,8), v(96,8)
    vT1c, vT1s = v(104,8), v(112,8)
    vT2c, vT2s = v(120,8), v(128,8)
    vD = v(136,16)
    def D(p,x): return vD.sub((p*2+x)*4, 4)
    vB = v(152,8)
    def B(p): return vB.sub(p*4,4)
    vE = v(160,16)
    vAD, vAD2, vAD3 = v(176), v(177), v(178)

    A("s_cmp_ge_u32", s(2), 256)
    A("s_cbranch_scc1", END)
    A("s_load_dwordx2", pWS, s(0,2), ARG["ws"])
    A("v_and_b32", vL, 63, v(0))
    A("v_lshrrev_b32", vT[0], 6, v(0))
    A("v_and_b32", vN, 15, vL)
    A("v_readfirstlane_b32", sW, vT[0])
    A("v_lshrrev_b32", vG, 4, vL)
    A("v_lshlrev_b32", vT[1], 7, vN)
    A("v_lshl_add_u32", vT[1], vG, 4, vT[1])
    A("v_lshlrev_b32", vT[2], 4, v(0))
    A("s_lshl_b32", t0, s(2), 13)
    A("s_add_u32", t1, t0, 4096)
    A.wait(lgkm=0)
    srd(A, sAT, pWS, WS_AT, 0x200000)
    srd(A, sWT, pWS, WS_WT, 0x200000)
    for p in range(2):
        for a_ in range(2):
            for u in range(2):
                A("buffer_load_dwordx4", IN(p,a_,u), vT[1], sAT, (t0 if p == 0 else t1), mods=f"offen offset:{a_*2048+u*64}")
    A("buffer_load_dwordx4", vW.sub(0,4), vT[2], sWT, t0, mods="offen")
    A("buffer_load_dwordx4", vW.sub(4,4), vT[2], sWT, t1, mods="offen")
    srd(A, sZT, pWS, WS_ZT, 0x200000)
    A("s_cmp_eq_u32", s(2), 0)
    A("s_mov_b32", sSC, f2u(2.0**-19))
    A("s_cselect_b32", sSC, f2u(2.0**-20), sSC)
    def gen_cs(dstC, dstS, dstN, ph, inc, tmp):
        pass
    A("s_lshl_b32", t2, sW, 4)
    A("v_add_u32", vT[3], t2, vN)
    A("v_cvt_f32_u32", vT[4], vT[3])
    A("v_mul_f32", vT[5], f2u(1/64), vT[4])
    A("v_lshlrev_b32", vT[6], 3, vG)
    A("v_cvt_f32_u32", vT[6], vT[6])
    A("v_mul_f32", vT[7], vT[5], vT[6])
    for u in range(2):
        for jj in range(4):
            k = 32*u + 2*jj
            A("v_mov_b32", vT[8], f2u(float(k)))
            A("v_fma_f32", vT[8], vT[5], vT[8], vT[7])
            A("v_add_f32", vT[9], vT[8], vT[5])
            A("v_cos_f32", vE[0], vT[8]); A("v_cos_f32", vE[1], vT[9])
            A("v_sin_f32", vE[2], vT[8]); A("v_sin_f32", vE[3], vT[9])
            A("v_cvt_pk_bf16_f32", vC64[4*u+jj], vE[0], vE[1])
            A("v_cvt_pk_bf16_f32", vS64[4*u+jj], vE[2], vE[3])
            A("v_xor_b32", vN64[4*u+jj], 0x80008000, vS64[4*u+jj])
    A("v_lshlrev_b32", vT[6], 2, vG)
    A("v_cvt_f32_u32", vT[6], vT[6])
    for b in range(2):
        A("v_add_u32", vT[3], 16*b, vN)
        A("v_cvt_f32_u32", vT[5], vT[3])
        A("v_mul_f32", vT[5], f2u(1/32), vT[5])
        A("v_mul_f32", vT[7], vT[5], vT[6])
        for jj in range(4):
            k = (0, 2, 16, 18)[jj]
            A("v_mov_b32", vT[8], f2u(float(k)))
            A("v_fma_f32", vT[8], vT[5], vT[8], vT[7])
            A("v_add_f32", vT[9], vT[8], vT[5])
            A("v_cos_f32", vE[0], vT[8]); A("v_cos_f32", vE[1], vT[9])
            A("v_sin_f32", vE[2], vT[8]); A("v_sin_f32", vE[3], vT[9])
            A("v_cvt_pk_bf16_f32", vC32[4*b+jj], vE[0], vE[1])
            A("v_cvt_pk_bf16_f32", vS32[4*b+jj], vE[2], vE[3])
            A("v_xor_b32", vN32[4*b+jj], 0x80008000, vS32[4*b+jj])
    A("v_mul_f32", vT[5], f2u(1/2048), vT[4])
    A("v_mul_f32", vT[7], vT[5], vT[6])
    for a_ in range(2):
        for r in range(4):
            A("v_mov_b32", vT[8], f2u(float(16*a_+r)))
            A("v_fma_f32", vT[8], vT[5], vT[8], vT[7])
            A("v_cos_f32", vE[0], vT[8]); A("v_sin_f32", vE[1], vT[8])
            A("s_nop", 0)
            A("v_mul_f32", vT1c[4*a_+r], sSC, vE[0])
            A("v_mul_f32", vT1s[4*a_+r], sSC, vE[1])
    A("v_add_f32", vT[10], vT[6], vT[6])
    A("s_lshl_b32", t2, sW, 4)
    A("v_lshlrev_b32", vT[3], 2, vG)
    A("v_add_u32", vT[3], t2, vT[3])
    A("v_cvt_f32_u32", vT[3], vT[3])
    for a_ in range(2):
        A("v_add_u32", vT[5], 16*a_, vN)
        A("v_cvt_f32_u32", vT[5], vT[5])
        A("v_mul_f32", vT[5], f2u(1/2048), vT[5])
        A("v_mul_f32", vT[7], vT[5], vT[3])
        for r in range(4):
            if r == 0: A("v_mov_b32", vT[8], vT[7])
            else: A("v_add_f32", vT[8], vT[8], vT[5])
            A("v_cos_f32", vT2c[4*a_+r], vT[8]); A("v_sin_f32", vT2s[4*a_+r], vT[8])
    A("s_movk_i32", t3, 144)
    A("v_mul_lo_u32", vAD, vN, t3)
    A("s_lshl_b32", t2, sW, 5)
    A("v_lshl_add_u32", vAD, vG, 3, vAD)
    A("v_add_u32", vAD, t2, vAD)
    A("v_lshrrev_b32", vT[8], 2, vN)
    A("v_lshlrev_b32", vT[8], 3, vT[8])
    A("v_and_b32", vT[9], 3, vN)
    A("v_add_u32", vT[8], vT[8], vT[9])
    A("v_mul_lo_u32", vAD2, vT[8], t3)
    A("v_lshl_add_u32", vAD2, vG, 4, vAD2)
    A("v_lshlrev_b32", vAD3, 6, vN)
    A("v_lshl_add_u32", vAD3, vG, 4, vAD3)
    A("s_lshl_b32", t2, sW, 10)
    A("v_add_u32", vAD3, t2, vAD3)
    A.wait(vm=2)
    for u in range(2):
        for a_ in range(2):
            A(MF16, D(0,a_), IN(0,a_,u), vC64.sub(4*u,4), 0 if u == 0 else D(0,a_))
            A(MF16, D(1,a_), IN(1,a_,u), vC64.sub(4*u,4), 0 if u == 0 else D(1,a_))
        for a_ in range(2):
            A(MF16, D(0,a_), IN(1,a_,u), vS64.sub(4*u,4), D(0,a_))
            A(MF16, D(1,a_), IN(0,a_,u), vN64.sub(4*u,4), D(1,a_))
    for a_ in range(2):
        for r in range(4):
            dr, di = D(0,a_)[r], D(1,a_)[r]
            c_, s_ = vT1c[4*a_+r], vT1s[4*a_+r]
            A("v_mul_f32", vE[8+r], di, s_)
            A("v_mul_f32", vE[12+r], dr, s_)
            A("v_fma_f32", vE[r], dr, c_, vE[8+r])
            A("v_fma_f32", vE[4+r], di, c_, "-"+str(vE[12+r]))
        for p in range(2):
            A("v_cvt_pk_bf16_f32", B(p)[2*a_], vE[4*p+0], vE[4*p+1])
            A("v_cvt_pk_bf16_f32", B(p)[2*a_+1], vE[4*p+2], vE[4*p+3])
    for b in range(2):
        A(MF16, D(0,b), vC32.sub(4*b,4), B(0), 0)
        A(MF16, D(1,b), vC32.sub(4*b,4), B(1), 0)
    for b in range(2):
        A(MF16, D(0,b), vS32.sub(4*b,4), B(1), D(0,b))
        A(MF16, D(1,b), vN32.sub(4*b,4), B(0), D(1,b))
    A.wait(vm=0)
    for b in range(2):
        for r in range(4):
            xr, xi = D(0,b)[r], D(1,b)[r]
            w = vW[4*b+r]
            A("v_lshlrev_b32", vT[0], 16, w)
            A("v_and_b32", vT[1], 0xffff0000, w)
            A("v_mul_f32", vE[8+r], xi, vT[1])
            A("v_mul_f32", vE[12+r], xr, vT[1])
            A("v_fma_f32", vE[r], xr, vT[0], "-"+str(vE[8+r]))
            A("v_fma_f32", vE[4+r], xi, vT[0], vE[12+r])
        for p in range(2):
            A("v_cvt_pk_bf16_f32", B(p)[2*b], vE[4*p+0], vE[4*p+1])
            A("v_cvt_pk_bf16_f32", B(p)[2*b+1], vE[4*p+2], vE[4*p+3])
    for a_ in range(2):
        A(MF16, D(0,a_), B(0), vC32.sub(4*a_,4), 0)
        A(MF16, D(1,a_), B(1), vC32.sub(4*a_,4), 0)
    for a_ in range(2):
        A(MF16, D(0,a_), B(1), vN32.sub(4*a_,4), D(0,a_))
        A(MF16, D(1,a_), B(0), vS32.sub(4*a_,4), D(1,a_))
    for a_ in range(2):
        for r in range(4):
            dr, di = D(0,a_)[r], D(1,a_)[r]
            c_, s_ = vT2c[4*a_+r], vT2s[4*a_+r]
            A("v_mul_f32", vE[8+r], di, s_)
            A("v_mul_f32", vE[12+r], dr, s_)
            A("v_fma_f32", vE[r], dr, c_, "-"+str(vE[8+r]))
            A("v_fma_f32", vE[4+r], di, c_, vE[12+r])
        for p in range(2):
            A("v_cvt_pk_bf16_f32", vB[4*p+2*a_], vE[4*p+0], vE[4*p+1])
            A("v_cvt_pk_bf16_f32", vB[4*p+2*a_+1], vE[4*p+2], vE[4*p+3])
            A("ds_write_b64", vAD, vB.sub(4*p+2*a_, 2), mods=f"offset:{p*4608 + a_*16*144}")
    A.wait(lgkm=0)
    A("s_barrier")
    for p in range(2):
        for a_ in range(2):
            for u in range(2):
                A("ds_read_b128", IN(p,a_,u), vAD2, mods=f"offset:{p*4608 + a_*4*144 + u*64}")
    A.wait(lgkm=0)
    for u in range(2):
        for a_ in range(2):
            A(MF16, D(0,a_), IN(0,a_,u), vC64.sub(4*u,4), 0 if u == 0 else D(0,a_))
            A(MF16, D(1,a_), IN(1,a_,u), vC64.sub(4*u,4), 0 if u == 0 else D(1,a_))
        for a_ in range(2):
            A(MF16, D(0,a_), IN(1,a_,u), vN64.sub(4*u,4), D(0,a_))
            A(MF16, D(1,a_), IN(0,a_,u), vS64.sub(4*u,4), D(1,a_))
    for p in range(2):
        for a_ in range(2):
            A("v_cvt_pk_bf16_f32", vB[4*p+2*a_], D(p,a_)[0], D(p,a_)[1])
            A("v_cvt_pk_bf16_f32", vB[4*p+2*a_+1], D(p,a_)[2], D(p,a_)[3])
        A("buffer_store_dwordx4", B(p), vAD3, sZT, (t0 if p == 0 else t1), mods="offen")
    A.label(END)
    A("s_endpgm")
    return A, dict(nv=180, na=0, ns=32, lds=LDS_K2)
```

```python
from common import *

LDS_K3 = 65536 + 16384
def gen_k3(name="p3_kernel"):
    A = Asm()
    END = name + "_END"
    sX, sZT, sHC, sMEAN, sSSQ = s(8,4), s(12,4), s(16,4), s(20,4), s(24,4)
    sW, sRB, sDB, sMT, sKH = s(28), s(29), s(30), s(31), s(32)
    t0, t1, t2, t3 = s(33), s(34), s(35), s(36)
    pX, pWS = s(38,2), s(40,2)
    XCH = 65536
    vL, vN, vH = v(1), v(2), v(3)
    vT = [v(4+i) for i in range(12)]
    vL16 = v(16)
    vDF, vPH, vINC5 = v(17), v(18), v(19)
    vBA = [v(20), v(21)]
    vMEAN = v(22)
    vXR = v(24, 8)
    vF = v(64, 64)
    vACC = [v(128,16), v(144,16)]
    vZ = [[v(160,4), v(164,4)], [v(168,4), v(172,4)]]
    vO = v(176, 8)

    A("s_cmp_ge_u32", s(2), 256)
    A("s_cbranch_scc1", END)
    A("s_load_dwordx2", pX, s(0,2), ARG["x"])
    A("s_load_dwordx2", pWS, s(0,2), ARG["ws"])
    A("v_and_b32", vL, 63, v(0))
    A("v_lshrrev_b32", vT[0], 6, v(0))
    A("v_and_b32", vN, 31, vL)
    A("v_readfirstlane_b32", sW, vT[0])
    A("v_lshrrev_b32", vH, 5, vL)
    A("v_lshlrev_b32", vL16, 4, vL)
    A("s_and_b32", t0, s(2), 7)
    A("s_lshr_b32", t1, s(2), 6)
    A("s_lshl_b32", t1, t1, 3)
    A("s_add_u32", sRB, t0, t1)
    A("s_lshr_b32", t0, s(2), 3)
    A("s_and_b32", sDB, t0, 7)
    A("s_and_b32", sMT, sW, 1)
    A("s_lshr_b32", sKH, sW, 1)
    A("v_lshrrev_b32", vT[1], 3, vL)
    A("v_bfe_u32", vT[2], vL, 4, 1)
    A("v_lshlrev_b32", vT[2], 2, vT[2])
    A("v_and_b32", vT[3], 7, vL)
    A("v_xor_b32", vT[2], vT[2], vT[3])
    A("v_lshlrev_b32", vT[2], 4, vT[2])
    A("v_lshl_add_u32", vT[1], vT[1], 12, vT[2])
    A.wait(lgkm=0)
    srd(A, sZT, pWS, WS_ZT, 0x200000)
    A("s_lshl_b32", t0, sW, 19)
    A("s_lshl_b32", t1, sRB, 7)
    A("s_add_u32", t0, t0, t1)
    A("s_lshl_b32", t1, sW, 14)
    for i in range(16):
        A("s_add_u32", t2, t0, i*32768)
        A("s_add_u32", M0, t1, i*1024)
        A("s_nop", 0)
        A("buffer_load_dwordx4", vT[1], sZT, t2, mods="offen lds")
    srd(A, sX, pX, 0, SZ_X)
    srd(A, sMEAN, pWS, WS_MEAN, 8192)
    srd(A, sHC, pWS, WS_HC, 0x200000)
    srd(A, sSSQ, pWS, WS_SSQ, 2048*64)
    A("s_lshl_b32", t0, sRB, 6)
    A("s_lshl_b32", t1, sKH, 5)
    A("s_add_u32", t0, t0, t1)
    A("v_add_u32", vT[4], t0, vN)
    A("v_lshlrev_b32", vT[5], 2, vT[4])
    A("buffer_load_dword", vMEAN, vT[5], sMEAN, 0, mods="offen")
    A("v_lshlrev_b32", vT[5], 10, vT[4])
    A("v_lshl_add_u32", vT[5], vH, 5, vT[5])
    A("s_lshl_b32", t0, sDB, 7)
    A("s_lshl_b32", t1, sMT, 6)
    A("s_add_u32", t0, t0, t1)
    A("buffer_load_dwordx4", vXR.sub(0,4), vT[5], sX, t0, mods="offen")
    A("buffer_load_dwordx4", vXR.sub(4,4), vT[5], sX, t0, mods="offen offset:16")
    A("v_bfe_u32", vT[6], vN, 2, 1)
    A("v_lshlrev_b32", vT[6], 4, vT[6])
    A("v_lshrrev_b32", vT[7], 3, vN)
    A("v_lshl_add_u32", vT[6], vT[7], 2, vT[6])
    A("v_and_b32", vT[7], 3, vN)
    A("v_add_u32", vT[6], vT[6], vT[7])
    A("s_lshl_b32", t0, sDB, 6)
    A("s_lshl_b32", t1, sMT, 5)
    A("s_add_u32", t0, t0, t1)
    A("v_add_u32", vT[6], t0, vT[6])
    A("v_cvt_f32_u32", vDF, vT[6])
    A("v_mul_f32", vDF, f2u(1/512), vDF)
    A("s_lshl_b32", t0, sKH, 7)
    A("v_lshlrev_b32", vT[7], 2, vH)
    A("v_add_u32", vT[7], t0, vT[7])
    A("v_cvt_f32_u32", vT[7], vT[7])
    A("v_mul_f32", vPH, vDF, vT[7])
    A("v_mul_f32", vINC5, f2u(5.0), vDF)
    for sg in range(16):
        for jj in range(4):
            ta, tb = vT[8 + 2*(jj & 1)], vT[9 + 2*(jj & 1)]
            A("v_cos_f32", ta, vPH)
            A("v_sin_f32_e64", tb, "-"+str(vPH))
            A("v_add_f32", vPH, vPH, vINC5 if jj == 3 else vDF)
            A("v_cvt_pk_bf16_f32", vF[4*sg+jj], ta, tb)
    A("v_and_b32", vT[7], 1, vT[6])
    A("v_lshlrev_b32", vT[7], 15, vT[7])
    A("v_or_b32", vT[7], 0x3f80, vT[7])
    A("s_cmp_eq_u32", sKH, 0)
    A("s_cselect_b32", t0, 32, 0)
    A("v_cmp_gt_u32", VCC, t0, vL)
    A("v_cndmask_b32", vF[0], vF[0], vT[7], VCC)
    A("v_bfe_u32", vT[0], vL, 2, 2)
    A("v_lshl_add_u32", vT[1], vH, 3, vT[0])
    A("v_lshlrev_b32", vT[1], 7, vT[1])
    A("v_bfe_u32", vT[2], vL, 3, 1)
    A("v_xor_b32", vT[2], sKH, vT[2])
    A("v_lshl_add_u32", vT[1], vT[2], 6, vT[1])
    A("v_bfe_u32", vT[2], vL, 4, 1)
    A("v_lshl_add_u32", vT[1], vT[2], 5, vT[1])
    A("v_and_b32", vT[2], 3, vL)
    A("v_lshl_add_u32", vT[1], vT[2], 3, vT[1])
    A("s_lshl_b32", t0, sKH, 15)
    A("v_add_u32", vBA[0], t0, vT[1])
    A("v_xor_b32", vBA[1], 64, vBA[0])
    A.wait(vm=3)
    A("s_barrier")
    def rd(sg, par):
        for sl in range(2):
            A("ds_read_b64_tr_b16", vZ[par][sl].sub(0,2), vBA[sl], mods=f"offset:{sg*2048}")
            A("ds_read_b64_tr_b16", vZ[par][sl].sub(2,2), vBA[sl], mods=f"offset:{sg*2048+512}")
    rd(0, 0)
    for sg in range(16):
        par = sg & 1
        if sg < 15:
            rd(sg+1, par ^ 1); A.wait(lgkm=4)
        else:
            A.wait(lgkm=0)
        for sl in range(2):
            A(MF32, vACC[sl], vF.sub(4*sg,4), vZ[par][sl], (0 if sg == 0 else vACC[sl]))
    A("s_lshl_b32", t0, sW, 12)
    A("s_add_u32", t0, t0, XCH)
    A("v_add_u32", vT[1], t0, vL16)
    for q in range(4):
        A("ds_write_b128", vT[1], vACC[1].sub(4*q,4), mods=f"offset:{q*1024}")
    A.wait(lgkm=0)
    A("s_barrier")
    A("v_xor_b32", vT[1], 2 << 12, vT[1])
    for q in range(4):
        A("ds_read_b128", vACC[1].sub(4*q,4), vT[1], mods=f"offset:{q*1024}")
    A.wait(vm=0, lgkm=0)
    for i in range(8):
        A("v_lshlrev_b32", vT[2], 16, vXR[i])
        A("v_and_b32", vT[3], 0xffff0000, vXR[i])
        A("v_add_f32", vACC[0][2*i], vACC[0][2*i], vACC[1][2*i])
        A("v_add_f32", vACC[0][2*i+1], vACC[0][2*i+1], vACC[1][2*i+1])
        A("v_sub_f32", vT[2], vT[2], vMEAN)
        A("v_sub_f32", vT[3], vT[3], vMEAN)
        A("v_add_f32", vACC[0][2*i], vACC[0][2*i], vT[2])
        A("v_add_f32", vACC[0][2*i+1], vACC[0][2*i+1], vT[3])
        A("v_cvt_pk_bf16_f32", vO[i], vACC[0][2*i], vACC[0][2*i+1])
    A("v_mul_f32", vT[2], vACC[0][0], vACC[0][0])
    for i in range(1,16):
        A("v_fma_f32", vT[2], vACC[0][i], vACC[0][i], vT[2])
    A("v_mov_b32", vT[3], vT[2])
    A("v_permlane32_swap_b32", vT[2], vT[3])
    A("v_add_f32", vT[2], vT[2], vT[3])
    A("s_lshl_b32", t0, sRB, 1)
    A("s_add_u32", t0, t0, sKH)
    A("s_lshl_b32", t0, t0, 5)
    A("s_lshl_b32", t1, sDB, 1)
    A("s_add_u32", t1, t1, sMT)
    A("s_lshl_b32", t2, t1, 1)
    A("s_add_u32", t0, t0, t2)
    A("s_lshl_b32", t0, t0, 10)
    A("buffer_store_dwordx4", vO.sub(0,4), vL16, sHC, t0, mods="offen")
    A("buffer_store_dwordx4", vO.sub(4,4), vL16, sHC, t0, mods="offen offset:1024")
    A("v_lshlrev_b32", vT[4], 6, vT[4])
    A("s_lshl_b32", t1, t1, 2)
    A("buffer_store_dword", vT[2], vT[4], sSSQ, t1, mods="offen")
    A.label(END)
    A("s_endpgm")
    return A, dict(nv=184, na=0, ns=44, lds=LDS_K3)
```

```python
from common import *

SLOT = 28928
NSLOT = 5
UPOFF = 14464
LDS_K4 = SLOT*NSLOT
def gen_k4(name="p4_kernel"):
    A = Asm()
    END = name + "_END"
    sWm, sHC, sHH = s(8,4), s(12,4), s(16,4)
    sW, sMT, sFT = s(20), s(21), s(22)
    t0, t1, t2, t3 = s(23), s(24), s(25), s(26)
    sLB, sGO, sST = s(27), s(28), s(29)
    pG, pU, pWS = s(32,2), s(34,2), s(36,2)
    vL, vL16 = v(1), v(2)
    vT = [v(4+i) for i in range(8)]
    vP = v(12, 7)
    vRA = v(20)
    vRB = v(21)
    vW = [v(32, 28), v(64, 28)]
    vO = v(96, 8)
    aB = a(0, 128)
    aC = a(128, 112)

    A("s_cmp_ge_u32", s(2), 256)
    A("s_cbranch_scc1", END)
    A("s_load_dwordx4", s(32,4), s(0,2), ARG["wg"])
    A("s_load_dwordx2", pWS, s(0,2), ARG["ws"])
    A("v_and_b32", vL, 63, v(0))
    A("v_lshrrev_b32", vT[0], 6, v(0))
    A("v_lshlrev_b32", vL16, 4, vL)
    A("v_readfirstlane_b32", sW, vT[0])
    A("s_and_b32", t0, s(2), 1)
    A("s_lshl_b32", t0, t0, 3)
    A("s_lshr_b32", t1, s(2), 3)
    A("s_and_b32", t1, t1, 7)
    A("s_add_u32", sMT, t0, t1)
    A("s_lshr_b32", t0, s(2), 1)
    A("s_and_b32", t0, t0, 3)
    A("s_lshl_b32", t0, t0, 2)
    A("s_lshr_b32", t1, s(2), 6)
    A("s_add_u32", sFT, t0, t1)
    A("s_mov_b32", t3, (1<<32)//14 + 1)
    A("s_movk_i32", t2, 14)
    for i in range(7):
        A("v_add_u32", vT[1], 64*i, vL)
        A("v_mul_hi_u32", vT[2], vT[1], t3)
        A("v_mul_lo_u32", vT[3], vT[2], t2)
        A("v_sub_u32", vT[3], vT[1], vT[3])
        A("v_mul_u32_u24", vT[2], 3584, vT[2])
        A("v_lshl_add_u32", vP[i], vT[3], 4, vT[2])
    A.wait(lgkm=0)
    A("s_cmp_lt_u32", sW, 2)
    A("s_cselect_b32", sWm[0], pG[0], pU[0])
    A("s_cselect_b32", sWm[1], pG[1], pU[1])
    A("s_mov_b32", sWm[2], SZ_WG)
    A("s_mov_b32", sWm[3], 0x20000)
    srd(A, sHC, pWS, WS_HC, 0x200000)
    srd(A, sHH, pWS, WS_HH, SZ_HH)
    A("s_and_b32", t0, sW, 1)
    A("s_mul_i32", sGO, t0, 32*3584)
    A("s_mul_i32", t1, sFT, 224)
    A("s_add_u32", sGO, sGO, t1)
    A("s_mul_i32", sLB, t0, 7168)
    A("s_lshr_b32", t1, sW, 1)
    A("s_mul_i32", t1, t1, UPOFF)
    A("s_add_u32", sLB, sLB, t1)
    A("s_lshl_b32", sST, sMT, 2)
    A("s_add_u32", sST, sST, sW)
    A("s_lshl_b32", t0, sST, 15)
    A("s_mov_b32", s(30), t0)
    def group(ch):
        slot = ch % NSLOT
        for i in range(7):
            A("s_add_u32", t1, sGO, ch*64*3584)
            A("s_add_u32", M0, sLB, slot*SLOT + i*1024)
            A("s_nop", 0)
            A("buffer_load_dwordx4", vP[i], sWm, t1, mods="offen lds")
        for k in range(4):
            st = 4*ch + k
            A("s_add_u32", t1, s(30), st*1024)
            A("buffer_load_dwordx4", aB.sub(4*st,4), vL16, sHC, t1, mods="offen")
    for ch in range(5): group(ch)
    A("v_bfe_u32", vT[0], vL, 1, 1)
    A("v_mul_u32_u24", vT[0], UPOFF, vT[0])
    A("v_lshrrev_b32", vT[1], 5, vL)
    A("v_lshlrev_b32", vT[1], 4, vT[1])
    A("v_bfe_u32", vT[2], vL, 2, 2)
    A("v_add_u32", vT[1], vT[1], vT[2])
    A("v_mul_u32_u24", vT[1], 224, vT[1])
    A("v_add_u32", vT[0], vT[0], vT[1])
    A("v_and_b32", vT[1], 1, vL)
    A("v_lshl_add_u32", vT[0], vT[1], 4, vT[0])
    A("v_bfe_u32", vT[1], vL, 4, 1)
    A("v_lshl_add_u32", vRA, vT[1], 3, vT[0])
    def rd(step, t, base):
        k = step & 3
        o = (32*(k >> 1) + 8*(k & 1))*224 + 32*t
        dst = vW[step & 1].sub(4*t, 4)
        A("ds_read_b64_tr_b16", dst.sub(0,2), base, mods=f"offset:{o}")
        A("ds_read_b64_tr_b16", dst.sub(2,2), base, mods=f"offset:{o + 4*224}")
    A.wait(vm=44)
    A("s_barrier")
    for t in range(7): rd(0, t, vRA)
    waits = {0: 33, 1: 22, 2: 22, 3: 22, 4: 22, 5: 11, 6: 0}
    for step in range(32):
        ch = step >> 2
        last = (step & 3) == 3
        nbase = vRA
        if last and ch < 7:
            A.wait(vm=waits[ch])
            A("s_barrier")
            ns = (ch+1) % NSLOT
            d = (ns - ch % NSLOT)*SLOT
            A("v_add_u32", vRB, d & 0xFFFFFFFF, vRA)
            nbase = vRB
            if 1 <= ch <= 3: group(ch+4)
        for t in range(7):
            if step < 31: A.wait(lgkm=12)
            else: A.wait(lgkm=2*(6-t))
            A(MF32, aC.sub(16*t,16), vW[step & 1].sub(4*t,4), aB.sub(4*step,4), (0 if step == 0 else aC.sub(16*t,16)))
            if step < 31: rd(step+1, t, nbase)
        if last and ch < 7:
            A("v_mov_b32", vRA, vRB)
    A("s_mul_i32", t0, sST, 112*1024)
    A("s_mul_i32", t1, sFT, 7*1024)
    A("s_add_u32", t0, t0, t1)
    for t in range(7):
        acc = aC.sub(16*t, 16)
        tmp = vW[0].sub(0, 16) if t % 2 == 0 else vW[1].sub(0, 16)
        for i in range(16):
            A("v_accvgpr_read_b32", tmp[i], acc[i])
        for half in range(2):
            for r in range(4):
                g_, u_ = tmp[8*half + r], tmp[8*half + 4 + r]
                A("v_max_f32", g_, 0, g_)
                A("v_mul_f32", g_, g_, u_)
        o = vO.sub(4*(t & 1), 4)
        for half in range(2):
            A("v_cvt_pk_bf16_f32", o[2*half], tmp[8*half+0], tmp[8*half+1])
            A("v_cvt_pk_bf16_f32", o[2*half+1], tmp[8*half+2], tmp[8*half+3])
        A("s_add_u32", t1, t0, t*1024)
        A("buffer_store_dwordx4", o, vL16, sHH, t1, mods="offen")
    A.label(END)
    A("s_endpgm")
    return A, dict(nv=256, na=240, ns=40, lds=LDS_K4)
```

```python
from common import *

RING = 14
LDS_K5 = 4*RING*2048
def gen_k5(name="p5_kernel"):
    A = Asm()
    END = name + "_END"
    sWd, sHH, sHC, sMEAN, sSSQ, sOUT = s(8,4), s(12,4), s(16,4), s(20,4), s(24,4), s(28,4)
    sW, sRB, sDB = s(32), s(33), s(34)
    t0, t1, t2, t3 = s(35), s(36), s(37), s(38)
    sLB, sWO, sH0, sH1, sMT, sNT = s(39), s(40), s(41), s(42), s(43), s(44)
    pWd, pOut, pWS = s(48,2), s(50,2), s(52,2)
    vL, vL16, vN, vH = v(1), v(2), v(3), v(4)
    vT = [v(5+i) for i in range(8)]
    vDP = v(13)
    vRA = [v(14), v(15)]
    vMEAN = v(16); vS = v(17)
    vSS = v(20, 16)
    vHC = v(36, 8)
    vW = [[v(44,4), v(48,4)], [v(52,4), v(56,4)]]
    vO = v(60, 8)
    vB = v(72, RING*8)
    vC = v(184, 64)
    def Bf(slot, beta): return vB.sub(slot*8 + beta*4, 4)
    def C(tau): return vC.sub(16*tau, 16)

    A("s_cmp_ge_u32", s(2), 256)
    A("s_cbranch_scc1", END)
    A("s_load_dwordx4", s(48,4), s(0,2), ARG["wd"])
    A("s_load_dwordx2", pWS, s(0,2), ARG["ws"])
    A("v_and_b32", vL, 63, v(0))
    A("v_lshrrev_b32", vT[0], 6, v(0))
    A("v_lshlrev_b32", vL16, 4, vL)
    A("v_readfirstlane_b32", sW, vT[0])
    A("v_and_b32", vN, 31, vL)
    A("v_lshrrev_b32", vH, 5, vL)
    A("s_and_b32", t0, s(2), 7)
    A("s_lshl_b32", t0, t0, 2)
    A("s_lshr_b32", t1, s(2), 3)
    A("s_and_b32", t1, t1, 3)
    A("s_add_u32", sRB, t0, t1)
    A("s_lshr_b32", sDB, s(2), 5)
    A("s_and_b32", sMT, sW, 1)
    A("s_lshr_b32", sNT, sW, 1)
    A("v_lshrrev_b32", vT[1], 3, vL)
    A("v_bfe_u32", vT[2], vL, 4, 1)
    A("v_lshlrev_b32", vT[2], 2, vT[2])
    A("v_and_b32", vT[3], 7, vL)
    A("v_xor_b32", vT[2], vT[2], vT[3])
    A("v_lshlrev_b32", vT[2], 4, vT[2])
    A("v_lshl_add_u32", vDP, vT[1], 10, vT[2])
    A.wait(lgkm=0)
    srd(A, sWd, pWd, 0, SZ_WG)
    srd(A, sHH, pWS, WS_HH, SZ_HH)
    srd(A, sHC, pWS, WS_HC, 0x200000)
    srd(A, sMEAN, pWS, WS_MEAN, 8192)
    srd(A, sSSQ, pWS, WS_SSQ, 2048*64)
    srd(A, sOUT, pOut, 0, SZ_X)
    A("s_mul_i32", sWO, sW, 28*16*1024)
    A("s_lshl_b32", t0, sDB, 7)
    A("s_add_u32", sWO, sWO, t0)
    A("s_mul_i32", sLB, sW, RING*2048)
    A("s_lshl_b32", t0, sRB, 1)
    A("s_add_u32", t1, t0, sNT)
    A("s_mul_i32", sH0, t1, 112*1024)
    A("s_xor_b32", t1, sNT, 1)
    A("s_add_u32", t1, t0, t1)
    A("s_mul_i32", sH1, t1, 112*1024)
    A("s_mul_i32", t0, sW, 28*1024)
    A("s_add_u32", sH0, sH0, t0)
    A("s_add_u32", sH1, sH1, t0)
    A("s_lshl_b32", t0, sRB, 6)
    A("s_lshl_b32", t1, sNT, 5)
    A("s_add_u32", t0, t0, t1)
    A("v_add_u32", vS, t0, vN)
    A("v_lshlrev_b32", vT[4], 2, vS)
    A("buffer_load_dword", vMEAN, vT[4], sMEAN, 0, mods="offen")
    A("v_lshlrev_b32", vT[4], 6, vS)
    for q in range(4):
        A("buffer_load_dwordx4", vSS.sub(4*q,4), vT[4], sSSQ, 0, mods=f"offen offset:{16*q}")
    A("s_lshl_b32", t0, sRB, 1)
    A("s_add_u32", t0, t0, sNT)
    A("s_lshl_b32", t0, t0, 5)
    A("s_lshl_b32", t1, sDB, 1)
    A("s_add_u32", t1, t1, sMT)
    A("s_lshl_b32", t1, t1, 1)
    A("s_add_u32", t0, t0, t1)
    A("s_lshl_b32", t0, t0, 10)
    A("buffer_load_dwordx4", vHC.sub(0,4), vL16, sHC, t0, mods="offen")
    A("buffer_load_dwordx4", vHC.sub(4,4), vL16, sHC, t0, mods="offen offset:1024")
    def fill(i):
        slot = i % RING
        for i2 in range(2):
            A("s_add_u32", t1, sWO, (16*i + 8*i2)*1024)
            A("s_add_u32", M0, sLB, slot*2048 + i2*1024)
            A("s_nop", 0)
            A("buffer_load_dwordx4", vDP, sWd, t1, mods="offen lds")
        A("s_add_u32", t1, sH0, i*1024)
        A("buffer_load_dwordx4", Bf(slot,0), vL16, sHH, t1, mods="offen")
        A("s_add_u32", t1, sH1, i*1024)
        A("buffer_load_dwordx4", Bf(slot,1), vL16, sHH, t1, mods="offen")
    for i in range(RING): fill(i)
    A("v_bfe_u32", vT[0], vL, 2, 2)
    A("v_lshl_add_u32", vT[1], vH, 3, vT[0])
    A("v_lshlrev_b32", vT[1], 7, vT[1])
    A("v_bfe_u32", vT[2], vL, 3, 1)
    A("v_xor_b32", vT[2], sMT, vT[2])
    A("v_lshl_add_u32", vT[1], vT[2], 6, vT[1])
    A("v_and_b32", vT[2], 1, vL)
    A("v_lshl_add_u32", vT[1], vT[2], 5, vT[1])
    A("v_bfe_u32", vT[2], vL, 4, 1)
    A("v_lshl_add_u32", vT[1], vT[2], 4, vT[1])
    A("v_bfe_u32", vT[2], vL, 1, 1)
    A("v_lshl_add_u32", vT[1], vT[2], 3, vT[1])
    A("v_add_u32", vRA[0], sLB, vT[1])
    A("v_xor_b32", vRA[1], 64, vRA[0])
    def rd(i):
        slot = i % RING
        for al in range(2):
            dst = vW[i & 1][al]
            A("ds_read_b64_tr_b16", dst.sub(0,2), vRA[al], mods=f"offset:{slot*2048}")
            A("ds_read_b64_tr_b16", dst.sub(2,2), vRA[al], mods=f"offset:{slot*2048+512}")
    A.wait(vm=(RING-1)*4)
    rd(0)
    for i in range(28):
        if i < 27:
            lastissued = min(27, i - 1 + RING)
            A.wait(vm=(lastissued - (i+1))*4)
            rd(i+1)
            A.wait(lgkm=4)
        else:
            A.wait(lgkm=0)
        for al in range(2):
            for be in range(2):
                tau = al + 2*be
                A(MF32, C(tau), vW[i & 1][al], Bf(i % RING, be), (0 if i == 0 else C(tau)))
        if i + RING < 28: fill(i + RING)
    A("s_barrier")
    for tau in range(1,4):
        A("s_xor_b32", t0, sW, tau)
        A("s_mul_i32", t0, t0, 3*4096)
        A("s_add_u32", t0, t0, (tau-1)*4096)
        A("v_add_u32", vT[0], t0, vL16)
        for q in range(4):
            A("ds_write_b128", vT[0], C(tau).sub(4*q,4), mods=f"offset:{q*1024}")
    A.wait(lgkm=0)
    A("s_barrier")
    A("s_mul_i32", t0, sW, 3*4096)
    A("v_add_u32", vT[0], t0, vL16)
    for tau in range(1,4):
        for q in range(4):
            A("ds_read_b128", C(tau).sub(4*q,4), vT[0], mods=f"offset:{(tau-1)*4096 + q*1024}")
    for k in (8,4,2,1):
        for i in range(k):
            A("v_add_f32", vSS[i], vSS[i], vSS[i+k])
    A("v_mul_f32", vSS[0], f2u(1/512), vSS[0])
    A("v_add_f32", vSS[0], f2u(1e-5), vSS[0])
    A("v_rcp_f32", vSS[0], vSS[0])
    A.wait(lgkm=0)
    for i in range(16):
        A("v_add_f32", C(0)[i], C(0)[i], C(1)[i])
        A("v_add_f32", C(2)[i], C(2)[i], C(3)[i])
    for i in range(16):
        A("v_add_f32", C(0)[i], C(0)[i], C(2)[i])
    for i in range(8):
        A("v_lshlrev_b32", vT[2], 16, vHC[i])
        A("v_and_b32", vT[3], 0xffff0000, vHC[i])
        A("v_add_f32", vT[2], vT[2], vMEAN)
        A("v_add_f32", vT[3], vT[3], vMEAN)
        A("v_fma_f32", vT[2], C(0)[2*i], vSS[0], vT[2])
        A("v_fma_f32", vT[3], C(0)[2*i+1], vSS[0], vT[3])
        A("v_cvt_pk_bf16_f32", vO[i], vT[2], vT[3])
    A("v_lshlrev_b32", vT[4], 10, vS)
    A("v_lshl_add_u32", vT[4], vH, 5, vT[4])
    A("s_lshl_b32", t0, sDB, 7)
    A("s_lshl_b32", t1, sMT, 6)
    A("s_add_u32", t0, t0, t1)
    A("buffer_store_dwordx4", vO.sub(0,4), vT[4], sOUT, t0, mods="offen")
    A("buffer_store_dwordx4", vO.sub(4,4), vT[4], sOUT, t0, mods="offen offset:16")
    A.label(END)
    A("s_endpgm")
    return A, dict(nv=248, na=0, ns=56, lds=LDS_K5)
```

```python
import sys, os
sys.path.insert(0, os.path.dirname(__file__))
from common import *
from k1 import gen_k1
from k2 import gen_k2
from k3 import gen_k3
from k4 import gen_k4
from k5 import gen_k5

def build(out, extra_nop_kernels=0, header=""):
    ks = [("p1_kernel", gen_k1), ("p2_kernel", gen_k2), ("p3_kernel", gen_k3), ("p4_kernel", gen_k4), ("p5_kernel", gen_k5)]
    hdr = open(os.path.join(os.path.dirname(__file__), "header.txt")).read()
    launches, text, desc = "", "", ""
    for name, g in ks:
        A, info = g(name)
        n = A.fix_hazards_fast()
        e = A.check_waits(name)
        print(f"{name}: {len(A.ins)} instrs, {n} pad states, {e} wait errors", file=sys.stderr)
        launches += f"; @launch kernel={name} grid=(256,1,1) block=(256,1,1) lds={info['lds']}\n"
        text += kernel_text(name, A)
        desc += descriptor(name, info["nv"], info["na"], info["ns"])
    for i in range(extra_nop_kernels):
        name = f"nop{i}_kernel"
        launches += f"; @launch kernel={name} grid=(256,1,1) block=(256,1,1) lds=0\n"
        text += f".globl {name}\n.p2align 8\n.type {name},@function\n{name}:\n    s_endpgm\n"
        desc += descriptor(name, 8, 0, 16)
    s_ = hdr + launches + '.amdgcn_target "amdgcn-amd-amdhsa--gfx950"\n.text\n' + text + '.section .rodata,"a"\n' + desc
    open(out, "w").write(s_)

if __name__ == "__main__":
    build(sys.argv[1], int(sys.argv[2]) if len(sys.argv) > 2 else 0)
```
